```python
import torch

def _softmax(x, axis=-1):
    return torch.softmax(x, dim=axis)
def _gelu(x):
    return torch.nn.functional.gelu(x, approximate="tanh")
def _silu(x):
    return torch.nn.functional.silu(x)
def _sigmoid(x):
    return torch.sigmoid(x)
def _layernorm(x, axis=-1, eps=1e-5):
    m = x.mean(dim=axis, keepdim=True)
    v = x.var(dim=axis, keepdim=True, unbiased=False)
    return (x - m) / torch.sqrt(v + eps)
def _scatter_add(tgt, idx, src, axis=0):
    return tgt.clone().index_add_(axis, idx, src)
def _segment_sum(src, seg, n):
    out = torch.zeros((n,) + src.shape[1:], dtype=src.dtype)
    return out.index_add_(0, seg, src)
def _pad(x, pw):
    flat = tuple(v for pair in reversed(pw) for v in pair)
    return torch.nn.functional.pad(x, flat)

kernel_name = 'recurrent_scan__gqa_block_cached__glu_gated_bilinear__prompt'

def setup_inputs():

    _w = (lambda a: (lambda t: t.to(torch.bfloat16) if t.is_floating_point() else t)(torch.as_tensor(a)))
    def _A_setup():
        B, Sq, D = 1, 2048, 448
        Hq, Hkv, Sk, Dh = 16, 8, 2048, 256
        assert Hq % Hkv == 0, (Hq, Hkv)
        return {
            "x": _w((lambda *s: torch.randn(*s, dtype=torch.bfloat16) * 0.05)(B, Sq, D)),
            "k_cache": _w((lambda *s: torch.randn(*s, dtype=torch.bfloat16) * 1.6)(B, Hkv, Sk, Dh)),
            "v_cache": _w((lambda *s: torch.randn(*s, dtype=torch.bfloat16) * 1.6)(B, Hkv, Sk, Dh)),
            "wq": _w((lambda *s: torch.randn(*s, dtype=torch.bfloat16) * 1.6)(D, Hq * Dh) * (D ** -0.5)),
            "wo": _w((lambda *s: torch.randn(*s, dtype=torch.bfloat16) * 1.6)(Hq * Dh, D) * ((Hq * Dh) ** -0.5)),
        }
    _A_in = _A_setup()

    def _B_setup():
        B, S, D, F = 1, 2048, 448, 1792
        return {
            "x": _w((lambda *s: torch.randn(*s, dtype=torch.bfloat16) * 0.05)(B, S, D)),
            "w_gate": _w((lambda *s: torch.randn(*s, dtype=torch.bfloat16) * 0.2)(D, F) * (D ** -0.5)),
            "w_up": _w((lambda *s: torch.randn(*s, dtype=torch.bfloat16) * 0.2)(D, F) * (D ** -0.5)),
            "w_down": _w((lambda *s: torch.randn(*s, dtype=torch.bfloat16) * 0.2)(F, D) * (F ** -0.5)),
        }
    _B_in = _B_setup()

    return {
        "A_x": _A_in["x"],
        "A_k_cache": _A_in["k_cache"],
        "A_v_cache": _A_in["v_cache"],
        "A_wq": _A_in["wq"],
        "A_wo": _A_in["wo"],
        "B_x": _B_in["x"],
        "B_w_gate": _B_in["w_gate"],
        "B_w_up": _B_in["w_up"],
        "B_w_down": _B_in["w_down"],
    }

def reference(A_x, A_k_cache, A_v_cache, A_wq, A_wo, B_x, B_w_gate, B_w_up, B_w_down):
    def _A_ref(x, k_cache, v_cache, wq, wo):
        B, Sq, D = x.shape
        Hq, Dh = 16, 256
        Hkv = k_cache.shape[1]
        rep = Hq // Hkv
        q = (lambda x, *d: x.permute(*d))((x @ wq).reshape(B, Sq, Hq, Dh), 0, 2, 1, 3)
        k = (lambda x, n, axis: torch.repeat_interleave(x, n, dim=axis))(k_cache, rep, axis=1)
        v = (lambda x, n, axis: torch.repeat_interleave(x, n, dim=axis))(v_cache, rep, axis=1)
        scores = torch.einsum("bhqd,bhkd->bhqk", q, k) * (Dh ** -0.5)
        p = _softmax(scores, axis=-1)
        o = torch.einsum("bhqk,bhkd->bhqd", p, v)
        return (lambda x, *d: x.permute(*d))(o, 0, 2, 1, 3).reshape(B, Sq, Hq * Dh) @ wo

    def _B_ref(x, w_gate, w_up, w_down):
        g = torch.einsum("bsd,df->bsf", x, w_gate)
        u = torch.einsum("bsd,df->bsf", x, w_up)
        h = g * u
        return torch.einsum("bsf,fd->bsd", h, w_down)

    x = A_x
    xn = _layernorm(x, axis=-1)
    s = _A_ref(xn, A_k_cache, A_v_cache, A_wq, A_wo)
    g = _silu(_B_ref(xn, B_w_gate, B_w_up, B_w_down))
    return x + s * g
```

```python
import re

REG_RE = re.compile(r'^(-?)(\|?)([vas])(\d+)\|?$')
RNG_RE = re.compile(r'^(-?)([vas])\[(\d+):(\d+)\]$')


def regs_of(tok):
    tok = tok.strip()
    m = RNG_RE.match(tok)
    if m:
        return [f'{m.group(2)}{i}' for i in range(int(m.group(3)), int(m.group(4)) + 1)]
    m = REG_RE.match(tok)
    if m:
        return [f'{m.group(3)}{m.group(4)}']
    if tok in ('vcc',):
        return ['vcc']
    if tok in ('vcc_lo', 'vcc_hi'):
        return ['vcc']
    if tok in ('exec', 'exec_lo', 'exec_hi'):
        return ['exec']
    if tok == 'm0':
        return ['m0']
    return []


def R(kind, lo, n=1):
    if n == 1:
        return f'{kind}{lo}'
    return f'{kind}[{lo}:{lo + n - 1}]'


TRANS = ('v_exp_f32', 'v_log_f32', 'v_rcp_f32', 'v_rsq_f32', 'v_sqrt_f32', 'v_sin_f32', 'v_cos_f32')


class I:
    __slots__ = ('text', 'op', 'kind', 'defs', 'uses', 'srcC', 'tag', 'passes', 'cost', 'opnds')

    def __init__(self, text, tag=None):
        self.text = text
        self.tag = tag
        t = text.split(';')[0].strip()
        self.defs, self.uses, self.srcC = [], [], []
        self.passes = 0
        self.cost = 1
        if t.endswith(':') or t.startswith('.') or not t:
            self.op, self.kind, self.opnds = t, 'label', []
            self.cost = 0
            return
        parts = t.split(None, 1)
        op = parts[0]
        rest = parts[1] if len(parts) > 1 else ''
        toks = [x.strip() for x in rest.split(',')] if rest else []
        mods = []
        if toks:
            last = toks[-1].split()
            toks[-1] = last[0] if last else ''
            mods = last[1:]
        self.op, self.opnds = op, toks
        rr = [regs_of(x) for x in toks]
        flat = lambda l: [x for y in l for x in y]
        if op.startswith('v_mfma'):
            self.kind = 'mfma'
            self.defs = rr[0]
            self.uses = flat(rr[1:3])
            self.srcC = rr[3]
            self.passes = 8 if '32x32' in op else 4
            self.cost = 2
        elif op.startswith('ds_read') or op.startswith('ds_bpermute') or op.startswith('ds_swizzle'):
            self.kind = 'dsr'
            self.defs = rr[0]
            self.uses = flat(rr[1:])
        elif op.startswith('ds_write'):
            self.kind = 'dsw'
            self.uses = flat(rr)
        elif op.startswith('buffer_load') or op.startswith('global_load'):
            if 'lds' in mods or op.startswith('global_load_lds'):
                self.kind = 'dma'
                self.uses = flat(rr) + ['m0']
            else:
                self.kind = 'vld'
                self.defs = rr[0]
                self.uses = flat(rr[1:])
        elif op.startswith('buffer_store') or op.startswith('global_store'):
            self.kind = 'vst'
            self.uses = flat(rr)
        elif op.startswith('buffer_atomic') or op.startswith('global_atomic'):
            self.kind = 'vst'
            self.uses = flat(rr)
            if 'sc0' in mods:
                self.kind = 'vld'
                self.defs = rr[0]
        elif op.startswith('buffer_inv') or op.startswith('buffer_wbl2'):
            self.kind = 'vst'
        elif op.startswith('v_cmp'):
            self.kind = 'valu'
            self.defs = rr[0]
            self.uses = flat(rr[1:])
        elif op.startswith('v_permlane32_swap') or op.startswith('v_permlane16_swap') or op.startswith('v_swap'):
            self.kind = 'valu'
            self.defs = flat(rr)
            self.uses = flat(rr)
        elif op.startswith('v_readfirstlane') or op.startswith('v_readlane'):
            self.kind = 'valu'
            self.defs = rr[0]
            self.uses = flat(rr[1:])
        elif op.startswith('v_'):
            self.kind = 'valu'
            self.defs = rr[0] if rr else []
            self.uses = flat(rr[1:])
            if op.startswith('v_fmac') or op.startswith('v_dot2c') or op.startswith('v_pk_fmac') or op.startswith('v_writelane'):
                self.uses += rr[0]
            if '_co_' in op:
                self.defs = flat(rr[0:2])
                self.uses = flat(rr[2:])
            if op.startswith('v_cndmask') and len(toks) == 3:
                self.uses += ['vcc']
            if any(op.startswith(x) for x in TRANS):
                self.cost = 2
            if 'dpp' in op or any(m.startswith('row_') or m.startswith('quad_perm') for m in mods):
                self.uses += rr[0]
        elif op.startswith('s_load') or op.startswith('s_memtime') or op.startswith('s_memrealtime') or op.startswith('s_buffer_load'):
            self.kind = 'smem'
            self.defs = rr[0]
            self.uses = flat(rr[1:])
        elif op == 's_waitcnt':
            self.kind = 'wait'
        elif op == 's_barrier':
            self.kind = 'barrier'
        elif op == 's_nop':
            self.kind = 'nop'
            self.cost = int(toks[0], 0) + 1
        elif op.startswith('s_cbranch') or op == 's_branch' or op == 's_endpgm' or op.startswith('s_setpc'):
            self.kind = 'branch'
            if 'vcc' in op:
                self.uses = ['vcc']
            if 'scc' in op:
                self.uses = ['scc']
            if 'exec' in op:
                self.uses = ['exec']
            if op.startswith('s_setpc'):
                self.uses = flat(rr)
        elif op.startswith('s_cmp') or op.startswith('s_bitcmp'):
            self.kind = 'salu'
            self.defs = ['scc']
            self.uses = flat(rr)
        elif op in ('s_setprio', 's_sleep', 's_sethalt'):
            self.kind = 'salu'
        elif op.startswith('s_'):
            self.kind = 'salu'
            self.defs = rr[0] + (['scc'] if not op.startswith('s_mov') and not op.startswith('s_mul') and not op.startswith('s_cselect') and not op.startswith('s_getreg') else [])
            self.uses = flat(rr[1:])
            if op.startswith('s_addc') or op.startswith('s_subb') or op.startswith('s_cselect'):
                self.uses += ['scc']
            if op.startswith('s_addk') or op.startswith('s_mulk'):
                self.uses += rr[0]
            if 'saveexec' in op:
                self.defs += ['exec']
                self.uses += ['exec']
        else:
            raise ValueError('unknown instr: ' + text)

    def waits(self):
        vm = lg = None
        m = re.search(r'vmcnt\((\d+)\)', self.text)
        if m:
            vm = int(m.group(1))
        m = re.search(r'lgkmcnt\((\d+)\)', self.text)
        if m:
            lg = int(m.group(1))
        return vm, lg

    def states(self):
        if self.kind == 'label':
            return 0
        if self.kind == 'nop':
            return self.cost
        return 1

    def __repr__(self):
        return self.text


def L(*texts):
    out = []
    for t in texts:
        if isinstance(t, I):
            out.append(t)
        elif isinstance(t, (list, tuple)):
            out += L(*t)
        else:
            for ln in t.split('\n'):
                if ln.strip():
                    out.append(I(ln.strip()))
    return out


def is_trans(i):
    return i.kind == 'valu' and any(i.op.startswith(x) for x in TRANS)


class CheckError(Exception):
    pass


def check_trace(trace, verbose=False, name=''):
    errs = []
    n = len(trace)

    def err(k, msg):
        ctx = ' | '.join(x.text for x in trace[max(0, k - 2):k + 1])
        errs.append(f'[{name} @{k}] {msg}   :: {ctx}')

    pos = 0
    lastw = {}
    lastC = {}
    laststore = {}
    for k, i in enumerate(trace):
        if i.kind == 'label':
            continue

        def dist(p):
            return pos - p - 1

        allr = i.uses + i.srcC
        for r in allr:
            if r not in lastw:
                continue
            p, w = lastw[r]
            d = dist(p)
            if w.kind == 'mfma':
                need_all = {4: 8, 8: 12}[w.passes]
                if i.kind == 'mfma':
                    if r in i.srcC and r not in i.uses:
                        if i.srcC == w.defs and i.passes == w.passes:
                            need = 0
                        else:
                            need = {4: 6, 8: 10}[w.passes]
                    else:
                        need = need_all
                else:
                    need = need_all
                if d < need:
                    err(k, f'mfma D {r} -> read needs {need} has {d}')
            elif w.kind == 'valu':
                if i.kind == 'mfma' and r[0] in 'va' and d < 2:
                    err(k, f'valu write {r} -> mfma read needs 2 has {d}')
                if is_trans(w) and i.kind == 'valu' and not is_trans(i) and d < 1:
                    err(k, f'trans {r} -> valu needs 1 has {d}')
                if is_trans(w) and i.kind in ('dsw', 'vst', 'dsr', 'vld', 'dma') and d < 1:
                    err(k, f'trans {r} -> mem needs 1 has {d} (conservative)')
                if i.op.startswith('v_permlane') and d < 2:
                    err(k, f'valu {r} -> permlane needs 2 has {d}')
                if ('dpp' in i.op or 'row_' in i.text or 'quad_perm' in i.text) and r[0] == 'v' and d < 2:
                    err(k, f'valu {r} -> dpp needs 2 has {d}')
                if (i.op.startswith('v_readfirstlane') or i.op.startswith('v_readlane')) and r[0] == 'v' and d < 1:
                    err(k, f'valu {r} -> readlane needs 1 has {d}')
                if (r[0] == 's' or r == 'vcc') and r != 'scc':
                    if i.kind == 'valu' and d < 2:
                        err(k, f'valu writes sgpr {r} -> valu read needs 2 has {d}')
                    if i.kind in ('dma', 'vld', 'vst') and d < 5:
                        err(k, f'valu writes sgpr {r} -> vmem read needs 5 has {d}')
                if w.op.startswith('v_dot') and d < 3:
                    same_acc = i.op == w.op and r in i.defs and i.op.startswith('v_dot2c') and r not in regs_of(i.opnds[1]) + regs_of(i.opnds[2])
                    same_acc = same_acc or (i.op == w.op and len(i.opnds) == 4 and r in regs_of(i.opnds[3]) and r not in regs_of(i.opnds[1]) + regs_of(i.opnds[2]))
                    if not same_acc:
                        err(k, f'dot {r} -> read needs 3 has {d}')
                if 'sdwa' in w.op and 'dst_sel:WORD' in w.text and i.kind == 'valu' and d < 1:
                    err(k, f'sdwa dst {r} -> valu needs 1')
            elif w.kind == 'salu':
                if r == 'm0' and i.kind == 'dma' and d < 1:
                    err(k, 'm0 write -> lds dma needs 1')
        for r in i.defs:
            if r in lastw:
                p, w = lastw[r]
                d = dist(p)
                if w.op.startswith('v_dot') and i.op != w.op and d < 3:
                    err(k, f'dot {r} -> WAW needs 3 has {d}')
                if w.kind == 'mfma' and i.kind in ('valu', 'dsr', 'vld'):
                    need = {4: 8, 8: 12}[w.passes]
                    if d < need:
                        err(k, f'mfma D {r} -> WAW needs {need} has {d}')
                if w.kind == 'mfma' and i.kind == 'mfma' and not (i.srcC == w.defs):
                    need = {4: 6, 8: 10}[w.passes]
                    if d < need:
                        err(k, f'mfma D {r} -> mfma D WAW needs {need} has {d} (conservative)')
            if r in lastC and i.kind in ('valu',):
                p, w = lastC[r]
                need = {4: 3, 8: 7}[w.passes]
                if dist(p) < need:
                    err(k, f'mfma srcC {r} WAR needs {need} has {dist(p)}')
            if r in laststore and i.kind != 'mfma':
                if dist(laststore[r]) < 2:
                    err(k, f'wide store data {r} WAR needs 2')
        if i.kind == 'mfma' and 'exec' in lastw:
            p, w = lastw['exec']
            if w.kind == 'valu' and dist(p) < 4:
                err(k, 'valu exec write -> mfma needs 4')
        for r in i.defs:
            lastw[r] = (pos + i.states() - 1, i)
        for r in i.srcC:
            lastC[r] = (pos, i)
        if i.kind == 'vst' and ('x4' in i.op or 'x3' in i.op):
            for r in regs_of(i.opnds[0] if i.op.startswith('buffer') else i.opnds[1]):
                laststore[r] = pos
        pos += i.states()

    lg = []
    vm = []
    tile_written = {}
    slot_gen = {}
    slot_reads = {}
    read_waited = set()
    maxlg = 0

    def tiles(x):
        return x if isinstance(x, list) else [x]

    pend_w = {}
    landed_unpub = set()
    for k, i in enumerate(trace):
        if i.kind == 'label':
            continue
        touched = set(i.uses) | set(i.defs) | set(i.srcC)
        for q, nm in ((lg, 'lgkm'), (vm, 'vm')):
            for o in q:
                bad = touched & set(o.defs)
                if bad:
                    err(k, f'{nm}: touches {sorted(bad)} still being loaded by `{o.text}`')
        if i.kind == 'wait':
            v, l = i.waits()
            if v is not None:
                while len(vm) > v:
                    o = vm.pop(0)
                    if o.tag and 'w' in o.tag:
                        for t in tiles(o.tag['w']):
                            pend_w[t].discard(id(o))
                            landed_unpub.add(t)
            if l is not None:
                if any(o.kind == 'smem' for o in lg) and l != 0:
                    err(k, 'lgkmcnt(N>0) with smem outstanding')
                while len(lg) > l:
                    o = lg.pop(0)
                    read_waited.add(id(o))
                    if o.tag and 'w' in o.tag:
                        for t in tiles(o.tag['w']):
                            pend_w[t].discard(id(o))
                            landed_unpub.add(t)
        elif i.kind == 'barrier':
            for t in list(landed_unpub):
                if not pend_w.get(t):
                    tile_written[t] = 'pub'
                    landed_unpub.discard(t)
            for s in slot_reads:
                slot_reads[s] = [o for o in slot_reads[s] if id(o) not in read_waited]
        elif i.kind in ('dsr', 'dsw', 'smem'):
            lg.append(i)
            if i.kind == 'smem' and ('x' in i.op or 'time' in i.op):
                pass
            maxlg = max(maxlg, len(lg))
        elif i.kind in ('dma', 'vld', 'vst'):
            vm.append(i)
            if len(vm) > 63:
                err(k, 'more than 63 vm ops outstanding (counter saturates)')
        if i.tag:
            if 'w' in i.tag:
                for t in tiles(i.tag['w']):
                    s, g = t
                    if slot_gen.get(s) != g:
                        if slot_reads.get(s):
                            err(k, f'WAR: write tile {t} while reads of the slot not waited+barriered: {slot_reads[s][0].text}')
                        slot_gen[s] = g
                    tile_written[t] = 'inflight'
                    pend_w.setdefault(t, set()).add(id(i))
            if 'r' in i.tag:
                for t in tiles(i.tag['r']):
                    s, g = t
                    if slot_gen.get(s) != g:
                        err(k, f'read of tile {t} but slot holds generation {slot_gen.get(s)}')
                    elif tile_written.get(t) != 'pub' and not i.tag.get('own'):
                        err(k, f'read of tile {t} not published (state {tile_written.get(t)})')
                    elif i.tag.get('own') and pend_w.get(t):
                        err(k, f'own read of tile {t} with writes outstanding')
                    slot_reads.setdefault(s, []).append(i)
    if verbose:
        print(f'check {name}: {n} instrs, max static lgkm outstanding {maxlg}, errors {len(errs)}')
    return errs


def clone(seq):
    return [I(i.text, i.tag) for i in seq]


def retag(seq, fn):
    out = []
    for i in seq:
        tag = i.tag
        if tag:
            tag = dict(tag)
            for key in ('r', 'w', 'need'):
                if key in tag:
                    v = tag[key]
                    tag[key] = [fn(t) for t in v] if isinstance(v, list) else fn(v)
        out.append(I(i.text, tag))
    return out


def add_lgkm_waits(seq, group=4, pre=None):
    lg = []
    for i in (pre or []):
        if i.kind == 'wait':
            _, l = i.waits()
            if l is not None:
                while len(lg) > l:
                    lg.pop(0)
        elif i.kind in ('dsr', 'dsw', 'smem'):
            lg.append(i)
    out = []
    for k, i in enumerate(seq):
        if i.kind == 'wait':
            if i.tag and i.tag.get('lg_ahead'):
                idx = -1
                cnt = 0
                for j in seq[k + 1:]:
                    if j.kind == 'mfma':
                        cnt += 1
                        if cnt > i.tag['lg_ahead']:
                            break
                        tj = set(j.uses) | set(j.srcC)
                        for q, o in enumerate(lg):
                            if tj & set(o.defs):
                                idx = max(idx, q)
                if idx >= 0:
                    nleft = min(len(lg) - 1 - idx, 15)
                    if i.tag.get('lg_only'):
                        i = I(f's_waitcnt lgkmcnt({nleft})', i.tag)
                    else:
                        i = I(i.text + f' lgkmcnt({nleft})', i.tag)
                elif i.tag.get('lg_only'):
                    continue
            _, l = i.waits()
            if l is not None:
                while len(lg) > l:
                    lg.pop(0)
            out.append(i)
            continue
        touched = set(i.uses) | set(i.defs) | set(i.srcC)
        idx = -1
        for q, o in enumerate(lg):
            if touched & set(o.defs):
                idx = q
        if idx >= 0:
            if i.kind == 'mfma' and group > 1:
                cnt = 0
                for j in seq[k + 1:]:
                    if j.kind == 'mfma':
                        cnt += 1
                        if cnt >= group:
                            break
                        tj = set(j.uses) | set(j.srcC)
                        for q, o in enumerate(lg):
                            if tj & set(o.defs):
                                idx = max(idx, q)
            nleft = len(lg) - 1 - idx
            if any(o.kind == 'smem' for o in lg):
                nleft = 0
            nleft = min(nleft, 15)
            out.append(I(f's_waitcnt lgkmcnt({nleft})'))
            while len(lg) > nleft:
                lg.pop(0)
        if i.kind in ('dsr', 'dsw', 'smem'):
            lg.append(i)
        out.append(i)
    return out


def text_of(seq):
    lines = []
    for i in seq:
        lines.append(i.text if i.kind == 'label' else '    ' + i.text)
    return '\n'.join(lines) + '\n'


def gap_report(seq):
    res = []
    cur = 0
    started = False
    for i in seq:
        if i.kind == 'mfma':
            if started:
                res.append(cur)
            started = True
            cur = 0
        else:
            cur += i.cost
    res.append(cur)
    return res


class Alloc:
    def __init__(self, kind, lo, hi):
        self.kind, self.next, self.hi = kind, lo, hi
        self.names = {}

    def get(self, name, n=1, align=1):
        b = (self.next + align - 1) // align * align
        if b + n > self.hi:
            raise ValueError(f'out of {self.kind} registers for {name}')
        self.next = b + n
        self.names[name] = (b, n)
        return b


_wid = [0]


def vmwait(need, lg_ahead=0):
    _wid[0] += 1
    return I('s_waitcnt vmcnt(63)', {'need': list(need), 'wid': _wid[0], 'lg_ahead': lg_ahead})


def resolve_vm(trace, codes):
    res = {}
    vm = []
    for i in trace:
        if i.kind in ('dma', 'vld', 'vst'):
            vm.append(i)
        elif i.kind == 'wait':
            if i.tag and 'wid' in i.tag:
                idx = -1
                need = set(i.tag['need'])
                for q, o in enumerate(vm):
                    if o.tag and 'w' in o.tag:
                        w = o.tag['w']
                        w = w if isinstance(w, list) else [w]
                        if need & set(w):
                            idx = q
                    if o.tag and 'id' in o.tag and o.tag['id'] in need:
                        idx = q
                n = min(len(vm) - 1 - idx, 63) if idx >= 0 else 63
                res[i.tag['wid']] = min(res.get(i.tag['wid'], 63), n)
                while len(vm) > n:
                    vm.pop(0)
            else:
                v, _ = i.waits()
                if v is not None:
                    while len(vm) > v:
                        vm.pop(0)
    for seq in [trace] + list(codes):
        for i in seq:
            if i.kind == 'wait' and i.tag and 'wid' in i.tag and i.tag['wid'] in res:
                i.text = re.sub(r'vmcnt\(\d+\)', f"vmcnt({res[i.tag['wid']]})", i.text)
    return res


def lgwait(ahead):
    return I('s_waitcnt lgkmcnt(15)', {'lg_ahead': ahead, 'lg_only': True})
```

```python
from asmlib import *


class Gap:
    __slots__ = ('S', 'M', 'P', 'V', 'X')

    def __init__(self):
        self.S, self.M, self.P, self.V, self.X = [], [], [], [], []

    def cost(self, add=None, cls=None):
        S = len([x for x in self.S if x.kind != 'label']) + len(self.P) + (1 if cls in ('S', 'P') else 0)
        M = len(self.M) + (1 if cls == 'M' else 0)
        V = [x.cost for x in self.V] + ([add.cost] if cls == 'V' else [])
        t = 4 + 4 * S + 8 * M
        if M >= 2 and not V and S == 0:
            t -= 4
        if V:
            t = max(t, 8) + 4 * sum(V)
            if len(V) >= 2:
                t += 1
        return t

    def ops(self):
        return self.S + self.M + self.P + self.V + self.X


class Sched:
    def __init__(self):
        self.mf = []
        self.gaps = []
        self.pre = []
        self.marks = {}

    def n(self):
        return len(self.mf)

    def add_mfma(self, i):
        self.mf.append(i)
        self.gaps.append(Gap())
        return len(self.mf) - 1

    def put(self, g, op, cls):
        if g < 0:
            self.pre.append(op)
            return g
        getattr(self.gaps[g], cls).append(op)
        return g

    def place(self, op, cls, lo, hi, limit=16, force=True):
        hi = min(hi, len(self.gaps) - 1)
        lo = max(lo, 0)
        assert lo <= hi, (op.text, lo, hi)
        best, bc = None, 1 << 30
        for g in range(lo, hi + 1):
            gp = self.gaps[g]
            if gp.X:
                continue
            c = gp.cost(op, cls)
            if c <= limit:
                return self.put(g, op, cls)
            d = c - max(gp.cost(), 16)
            if d < bc:
                best, bc = g, d
        if not force:
            return None
        assert best is not None, (op.text, lo, hi)
        return self.put(best, op, cls)

    def stream(self, ops, lo, hi, limit=16):
        g = lo
        order = {'S': 0, 'M': 1, 'V': 2}
        lastcls = -1
        k = 0
        while k < len(ops):
            op = ops[k]
            if isinstance(op, tuple):
                if op[1] > g:
                    g, lastcls = op[1], -1
                k += 1
                continue
            cls = cls_of(op)
            placed = False
            while g <= hi:
                gp = self.gaps[g]
                ok = order[cls] >= lastcls and not gp.X and gp.cost(op, cls) <= limit
                if ok:
                    self.put(g, op, cls)
                    lastcls = order[cls]
                    placed = True
                    if is_trans(op) or op.op.startswith('v_cmp') or (op.tag and op.tag.get('sep')):
                        g += 1
                        lastcls = -1
                    break
                g += 1
                lastcls = -1
            if not placed:
                rest = [x for x in ops[k:] if not isinstance(x, tuple)]
                self.gaps[hi].X += pad_hazards(rest)
                return hi
            k += 1
        return min(g, hi)

    def emit(self, a=0, b=None, with_pre=False):
        b = len(self.mf) if b is None else b
        out = list(self.pre) if with_pre else []
        for g in range(a, b):
            out.append(self.mf[g])
            out += self.gaps[g].ops()
        return out

    def report(self, a=0, b=None):
        b = len(self.mf) if b is None else b
        tot = 0
        over = []
        for g in range(a, b):
            c = max(16, self.gaps[g].cost()) + 4 * sum(x.cost for x in self.gaps[g].X)
            tot += c
            if c > 16:
                over.append((g - a, c))
        return tot, over


def cls_of(op):
    if op.kind in ('dsr', 'dsw', 'dma', 'vld', 'vst'):
        return 'M'
    if op.kind == 'valu':
        return 'V'
    return 'S'


def pad_hazards(ops):
    out = []
    for op in ops:
        need = 0
        for d, prev in enumerate(reversed(out[-4:])):
            dist = sum(x.states() for x in out[len(out) - d:])
            if prev.kind != 'valu':
                continue
            dep = set(prev.defs) & set(op.uses)
            if not dep:
                continue
            if is_trans(prev) and not is_trans(op):
                need = max(need, 1 - dist)
            if prev.op.startswith('v_dot') and prev.op != op.op:
                need = max(need, 3 - dist)
            if op.op.startswith('v_permlane'):
                need = max(need, 2 - dist)
            if op.op.startswith('v_readfirstlane') or op.op.startswith('v_readlane'):
                need = max(need, 1 - dist)
            if any(r[0] == 's' or r == 'vcc' for r in dep) and op.kind == 'valu':
                need = max(need, 2 - dist)
        if need > 0:
            out.append(I(f's_nop {need - 1}'))
        out.append(op)
    return out
```

```python
import sys
from asmlib import *
from sched import *

NAME = 'recurrent_scan__gqa_block_cached__glu_gated_bilinear__prompt'
K1 = 'attn_main_kernel'
K2 = 'reduce_out_kernel'
MF = 'v_mfma_f32_16x16x32_bf16'
SLOT = 16896
WS_F = 0
WS_S = 32 << 20
WS_T = 100 << 20
CSCALE = 1.4426950408889634 / 16


def f2u(x):
    import struct
    return struct.unpack('<I', struct.pack('<f', x))[0]


class Tile:
    def __init__(self, name, slot, dma):
        self.name, self.slot, self.dma = name, slot, dma
        self.first = self.last = None
        self.tag = None


def gen_k1(opt):
    D = opt.get('D', 8)
    G = 4
    RING = 16
    stamps = opt.get('stamps')
    vAT0, vAT1, vDW, vR2, vCR, vT, vLane, vDD = 0, 1, 2, 3, 5, 7, 13, 14
    vAD0, vAD1 = 3, 4
    vXD = 16
    vQA = 128
    vO = 128
    vAG0, vAG1, vDG = 192, 193, 194
    vL0 = 208
    vDA = [16, 48]
    vS = [80, 48]
    vE = 64
    vP = [16, 24]
    vNEG = 96
    vTM = 104
    vAK, vDV, vDK, vST, vL, vLT, vCK, vRL = 112, 113, 114, 115, 116, 118, 120, 122
    aGU, aQ, aH, aSV, aF = 0, 0, 112, 144, 192
    sX, sGU, sWQ, sWD, sK, sV, sWO, sWS = 4, 8, 12, 16, 20, 24, 28, 32
    sWv, sM0, sT, sCnt, sThr, sA, sB, sC = 36, 37, 38, 39, 40, 41, 42, 43
    sOne, sLo, sHi, sXq, sST, sM0g, sWi, sHd, sHead, sTb = 46, 47, 48, 49, 50, 54, 55, 58, 59, 60
    sTS = 64

    def frag(n):
        return aF + 4 * (n % RING)

    def tr_addr(slot, lo, hi):
        return (lo, slot * SLOT) if slot < 4 else (hi, (slot - 4) * SLOT)

    sc = Sched()
    frags = []
    tiles = []
    gen_count = {}

    def new_tile(name, slot, dma):
        t = Tile(name, slot, dma)
        gen_count[slot] = gen_count.get(slot, 0) + 1
        t.tag = (slot, gen_count[slot])
        for pre, d, post in dma:
            d.tag = {'w': t.tag}
        tiles.append(t)
        return t

    def add_frag(tile, reads, mfmas):
        n = len(frags)
        rl = []
        for op, ro, ar, off in reads:
            w = 4 if op == 'ds_read_b128' else 2
            rl.append(I(f'{op} {R("a", frag(n) + ro, w)}, v{ar} offset:{off}', {'r': tile.tag}))
        frags.append(rl)
        for m in mfmas(R('a', frag(n), 4)):
            sc.add_mfma(m)
        if tile.first is None:
            tile.first = n
        tile.last = n

    TR = 'ds_read_b64_tr_b16'

    def xd(qg, ks):
        return R('v', vXD + (qg * 14 + ks) * 4, 4)

    def snake(n):
        return (1, 0) if n & 1 else (0, 1)

    marks = {}
    marks['P1'] = 0
    for j in range(7):
        sg = 2 * (j & 3)
        dma = []
        for p in range(7):
            pre = []
            if p == 0:
                pre = L(f's_mov_b32 s{sHd}, {j * 229376}', f's_add_u32 m0, s{sM0g}, {sg * SLOT}')
            if p == 4:
                pre = L(f's_add_u32 m0, s{sM0g}, {sg * SLOT + 4096}')
            dma.append((pre, I(f'buffer_load_dwordx4 v{vDG + p}, s[{sGU}:{sGU + 3}], s{sHd} offen offset:{1024 * (p & 3)} lds'), []))
        tg = new_tile(f'G{j}', sg, dma)
        tu = new_tile(f'U{j}', sg + 1, [])
        for pre, d, post in dma:
            d.tag = {'w': [tg.tag, tu.tag]}
        for kp in range(2):
            ks = 2 * j + kp
            for t in range(7):
                for mat, tl in ((0, tg), (1, tu)):
                    ar, base = tr_addr(tl.slot, vAG0, vAG1)
                    rd = [(TR, 2 * e, ar, base + kp * 7168 + e * 3584 + 32 * t) for e in range(2)]

                    def mk(A, mat=mat, t=t, ks=ks):
                        out = []
                        for qg in snake(mat):
                            acc = R('a', aGU + ((mat * 7 + t) * 2 + qg) * 4, 4)
                            out.append(I(f'{MF} {acc}, {A}, {xd(qg, ks)}, {acc if ks else 0}'))
                        return out
                    add_frag(tl, rd, mk)
        tu.first = tg.first
        tg.last = tu.last
    nslot = 6
    for h in range(2):
        marks[f'P2{h}'] = len(frags)
        for j in range(7):
            slot = nslot
            nslot = (nslot + 1) & 7
            dma = []
            for i in range(4):
                pre = L(f's_add_u32 m0, s{sM0}, {slot * SLOT}') if i == 0 else []
                so = '0' if i == 0 else f's{sWi + i - 1}'
                post = []
                if i == 3:
                    inc = 524288 if j < 6 else (256 - 6 * 524288)
                    post = L(f'v_add_u32 v{vDW}, {inc & 0xffffffff}, v{vDW}')
                dma.append((pre, I(f'buffer_load_dwordx4 v{vDW}, s[{sWQ}:{sWQ + 3}], {so} offen offset:{1056 * i} lds'), post))
            tl = new_tile(f'W{h}{j}', slot, dma)
            ar, base = tr_addr(slot, vAT0, vAT1)
            for kp in range(2):
                ks = 2 * j + kp
                for t in range(8):
                    rd = [(TR, 2 * e, ar, base + (2 * kp + e) * 256 + 32 * t) for e in range(2)]

                    def mk(A, h=h, t=t, ks=ks):
                        out = []
                        for qg in snake(t):
                            acc = R('v', vQA + ((8 * h + t) * 2 + qg) * 4, 4)
                            out.append(I(f'{MF} {acc}, {A}, {xd(qg, ks)}, {acc if ks else 0}'))
                        return out
                    add_frag(tl, rd, mk)

    def proj_tile(name, slot, srd, inc, ksteps, Bfn, accbuf, first, half_last=False):
        dma = []
        for i in range(4):
            pre = L(f's_add_u32 m0, s{sM0}, {slot * SLOT + 160 * i}')
            post = L(f'v_add_u32 v{vDD}, {inc & 0xffffffff}, v{vDD}') if i == 3 else []
            dma.append((pre, I(f'buffer_load_dwordx4 v{vDD}, s[{srd}:{srd + 3}], 0 offen offset:{896 * i} lds'), post))
        tl = new_tile(name, slot, dma)
        return tl

    def proj_frags(tl, Bfn, accbuf, first, half_last):
        ar, base = tr_addr(tl.slot, vAD0, vAD1)
        for s in range(4):
            for nt in range(4):
                rd = []
                for e in range(2):
                    if half_last and s == 3 and e == 1:
                        continue
                    a = 4 * s + 2 * e
                    rd.append((TR, 2 * e, ar, base + (a >> 3) * 8448 + (a & 7) * 128 + 32 * nt))

                def mk(A, s=s, nt=nt):
                    out = []
                    for qg in snake(nt):
                        acc = R('v', accbuf + (nt * 2 + qg) * 4, 4)
                        out.append(I(f'{MF} {acc}, {A}, {Bfn(qg, s)}, {0 if (first and s == 0) else acc}'))
                    return out
                add_frag(tl, rd, mk)

    marks['P3'] = len(frags)
    dtiles = []
    for g in range(7):
        slot = nslot
        nslot = (nslot + 1) & 7
        tl = proj_tile(f'D{g}', slot, sWD, 128 if g < 6 else -6 * 128, 4, None, None, True)
        dtiles.append(tl)
        proj_frags(tl, lambda qg, s: R('a', aH + (qg * 4 + s) * 4, 4), vDA[g & 1], True, True)

    def kslot(n):
        return 4 + (n & 3)

    def vslot(n):
        return (n + 3) & 3

    def kv_tile(kind, n, steady):
        slot = kslot(n) if kind == 'K' else vslot(n)
        srd = sK if kind == 'K' else sV
        dma = []
        for i in range(4):
            pre = L(f's_add_u32 m0, s{sM0}, {slot * SLOT + 32 * i}')
            post = []
            if steady:
                vo, so = (vDK if kind == 'K' else vDV), sT
                if (kind == 'K' or n == 62) and i == 3:
                    post = L(f's_add_u32 s{sT}, s{sT}, 16384')
            else:
                vo, so = vDV, sHd
                if i == 0:
                    pre = L(f's_mov_b32 s{sHd}, {n * 16384}') + pre
            dma.append((pre, I(f'buffer_load_dwordx4 v{vo}, s[{srd}:{srd + 3}], s{so} offen offset:{1024 * i} lds'), post))
        return new_tile(f'{kind}{n}', slot, dma)

    KT, VT = {}, {}
    for kind, n in (('V', 0), ('K', 0), ('K', 1), ('K', 2), ('K', 3), ('V', 1), ('V', 2), ('K', 4)):
        (KT if kind == 'K' else VT)[n] = kv_tile(kind, n, False)
    for i in range(0, 61):
        VT[i + 3] = kv_tile('V', i + 3, True)
        if i + 5 < 64:
            KT[i + 5] = kv_tile('K', i + 5, True)

    def qk(n):
        tl = KT[n]
        for f in range(16):
            kg, ks = f >> 3, f & 7
            rd = [('ds_read_b128', 0, vAK, (tl.slot - 4) * SLOT + 512 * kg + 64 * ks)]

            def mk(A, kg=kg, ks=ks):
                out = []
                for qg in range(2):
                    S = R('v', vS[n & 1] + 8 * kg + 4 * qg, 4)
                    C = S if ks else (R('v', vNEG + 4 * qg, 4) if n else 0)
                    out.append(I(f'{MF} {S}, {A}, {R("a", aQ + (qg * 8 + ks) * 4, 4)}, {C}'))
                return out
            add_frag(tl, rd, mk)

    def pv(n):
        tl = VT[n]
        for dt in range(16):
            rd = [(TR, 2 * e, vAT0, tl.slot * SLOT + 512 * e + 32 * dt) for e in range(2)]

            def mk(A, dt=dt):
                out = []
                for qg in snake(dt):
                    O = R('v', vO + (dt * 2 + qg) * 4, 4)
                    out.append(I(f'{MF} {O}, {A}, {R("v", vP[n & 1] + 4 * qg, 4)}, {O if n else 0}'))
                return out
            add_frag(tl, rd, mk)

    marks['QK0'] = len(frags)
    qk(0)
    it0 = {}
    for i in range(64):
        it0[i] = len(frags)
        if i < 63:
            qk(i + 1)
        pv(i)
    marks['P5'] = len(frags)
    oslots = [4, 5, 3, 6, 0, 7, 1, 2]
    otiles = []
    for k in range(14):
        g, hf = k >> 1, k & 1
        inc = 114688 if hf == 0 else (128 - 114688)
        tl = proj_tile(f'O{k}', oslots[k & 7], sWO, inc, 4, None, None, True)
        otiles.append(tl)
        proj_frags(tl, lambda qg, s, hf=hf: R('v', vO + ((2 * (4 * hf + s)) * 2 + qg) * 4, 4), vDA[(g + 1) & 1], hf == 0, False)
    NP = len(frags)
    marks['END'] = NP

    bars = []
    for t in tiles:
        if t.name[0] in 'GWD' or t.name in ('K0', 'K1') or t.name[0] == 'O':
            b = t.first - D - 1
            bars.append(b)
    for i in range(63):
        bars.append(it0[i] + 31 - D)
    bars = sorted(set(bars))
    ptype = {}
    for b in bars:
        if b >= 0:
            ptype[b] = 'bar'

    dma_at = {}
    pre_dma = []
    prev_in_slot = {}
    xtra_k4 = None
    lastp = -1

    def generic_dma(t, minbar=None):
        nonlocal lastp
        occ = [prev_in_slot.get(t.slot)]
        if t.name[0] == 'G':
            occ.append(prev_in_slot.get(t.slot + 1))
        occ = [o for o in occ if o is not None]
        if not occ and minbar is None:
            pre_dma.extend(t.dma)
            return
        need = max([o.last for o in occ] + [minbar if minbar is not None else -1])
        bp = min(b for b in bars if b >= need)
        p = max(bp + 1, lastp + 2)
        for d in t.dma:
            while p in ptype or p % 4 == 3:
                p += 1
            ptype[p] = 'dma'
            dma_at[p] = d
            lastp = p
            p += 2
        assert lastp < t.first - D - 1, (t.name, lastp, t.first)

    def fixed_dma(t, pairs):
        nonlocal lastp
        for d, p in zip(t.dma, pairs):
            assert p not in ptype, (t.name, p, ptype[p])
            ptype[p] = 'dma'
            dma_at[p] = d
            lastp = p

    EXP_V = [11, 13, 15, 17, 18, 19, 21, 22]
    EXP_K = [25, 27, 29, 31, 33, 35, 37, 39]
    for t in tiles:
        nm = t.name
        num = int(nm[1:]) if nm[0] in 'KVO' else None
        if nm[0] == 'U':
            pass
        elif nm == 'K4':
            xtra_k4 = t
        elif nm[0] == 'V' and num >= 3:
            b = it0[num - 3]
            fixed_dma(t, [b + 24, b + 26, b + 28, b + 30])
        elif nm[0] == 'K' and num >= 5:
            b = it0[num - 5]
            fixed_dma(t, [b + 32, b + 34, b + 36, b + 38])
        elif nm[0] == 'O' and num < 6:
            i, second = {0: (59, 1), 1: (60, 1), 2: (61, 0), 3: (61, 1), 4: (62, 0), 5: (62, 1)}[num]
            b = it0[i] + (32 if second else 24)
            fixed_dma(t, [b, b + 2, b + 4, b + 6])
        else:
            generic_dma(t)
        prev_in_slot[t.slot] = t
    for n in range(1, 63):
        for p in EXP_V:
            assert it0[n - 1] + p not in ptype
            ptype[it0[n - 1] + p] = 'exp'

    for n, rl in enumerate(frags):
        p = n - D
        if p < 0:
            continue
        if len(rl) == 1 or p in ptype:
            for x in rl:
                sc.put(2 * p, x, 'M')
        else:
            sc.put(2 * p, rl[0], 'M')
            sc.put(2 * p + 1, rl[1], 'M')
    fr = {t: t.first - D for t in tiles}
    allb = [-1 << 30] + [b for b in bars if b >= 0] + [1 << 30]
    pre_need = [t.tag for t in tiles if fr[t] <= allb[1]]
    for k in range(1, len(allb) - 1):
        b, nb = allb[k], allb[k + 1]
        need = [t.tag for t in tiles if b < fr[t] <= nb]
        sc.put(2 * b + 1, vmwait(need, lg_ahead=2 * G if b % 4 == 3 else 0), 'S')
        sc.put(2 * b + 1, I('s_barrier'), 'S')
    for p in range(3, NP - 1, 4):
        if ptype.get(p) != 'bar':
            sc.gaps[2 * p + 1].S.insert(0, lgwait(2 * G))
    prevp = None
    pre_tail, init_tail = [], []
    k4gap = 2 * it0[0] - 1
    for p, (pre, d, post) in sorted(dma_at.items()):
        if prevp is None:
            pre_tail += pre
        elif 2 * prevp + 1 <= k4gap < 2 * p + 1:
            init_tail += pre
        else:
            for k, x in enumerate(reversed(pre)):
                if k == 0:
                    sc.put(2 * prevp + 1, x, 'P')
                else:
                    sc.place(x, 'S', 2 * prevp + 2, 2 * p)
        sc.put(2 * p + 1, d, 'M')
        prevp = p
    for p, (pre, d, post) in sorted(dma_at.items()):
        for x in post:
            sc.place(x, cls_of(x), 2 * p + 2, 2 * p + 3)

    ops = []
    k = 0
    for t in range(7):
        for qg in range(2):
            g0 = aGU + ((0 * 7 + t) * 2 + qg) * 4
            u0 = aGU + ((1 * 7 + t) * 2 + qg) * 4
            for hh in range(2):
                a, b, c = vT + (k % 2) * 3, vT + (k % 2) * 3 + 1, vT + (k % 2) * 3 + 2
                k += 1
                ops += L(f'v_accvgpr_read_b32 v{a}, a{g0 + 2 * hh}', f'v_accvgpr_read_b32 v{c}, a{u0 + 2 * hh}',
                         f'v_mul_f32 v{a}, v{a}, v{vR2 + qg}', f'v_accvgpr_read_b32 v{b}, a{g0 + 2 * hh + 1}',
                         f'v_mul_f32 v{a}, v{a}, v{c}', f'v_accvgpr_read_b32 v{c}, a{u0 + 2 * hh + 1}',
                         f'v_mul_f32 v{b}, v{b}, v{vR2 + qg}', f'v_mul_f32 v{b}, v{b}, v{c}',
                         f'v_cvt_pk_bf16_f32 v{a}, v{a}, v{b}',
                         f'v_accvgpr_write_b32 a{aH + (qg * 4 + (t >> 1)) * 4 + 2 * (t & 1) + hh}, v{a}')
    ops += L(f'v_accvgpr_read_b32 v{vAD0}, a{aSV}', f'v_accvgpr_read_b32 v{vAD1}, a{aSV + 1}')
    g_end = sc.stream(ops, 2 * marks['P20'] + 5, 2 * (marks['P3'] - D) - 2)

    def qconv(ks, qg):
        X, Y = vQA + ((2 * ks) * 2 + qg) * 4, vQA + ((2 * ks + 1) * 2 + qg) * 4
        o = []
        for r in range(4):
            o += L(f'v_mul_f32 v{X + r}, v{X + r}, v{vCR + qg}', f'v_mul_f32 v{Y + r}, v{Y + r}, v{vCR + qg}')
        o += L(f'v_cvt_pk_bf16_f32 v{X}, v{X}, v{X + 1}', f'v_cvt_pk_bf16_f32 v{Y}, v{Y}, v{Y + 1}',
               f'v_cvt_pk_bf16_f32 v{X + 1}, v{X + 2}, v{X + 3}', f'v_cvt_pk_bf16_f32 v{Y + 1}, v{Y + 2}, v{Y + 3}')
        sw = L(f'v_permlane32_swap_b32 v{X}, v{Y}', f'v_permlane32_swap_b32 v{X + 1}, v{Y + 1}',
               f'v_permlane16_swap_b32 v{X}, v{Y}', f'v_permlane16_swap_b32 v{X + 1}, v{Y + 1}')
        o[-1].tag = {'sep': 1}
        for x in sw:
            x.tag = {'sep': 1}
        o += sw
        q = aQ + (qg * 8 + ks) * 4
        o += L(f'v_accvgpr_write_b32 a{q}, v{X}', f'v_accvgpr_write_b32 a{q + 1}, v{X + 1}',
               f'v_accvgpr_write_b32 a{q + 2}, v{Y}', f'v_accvgpr_write_b32 a{q + 3}, v{Y + 1}')
        return o

    def outconv(g, buf):
        o = []
        for mp in range(2):
            for qg in range(2):
                A, B = buf + ((2 * mp) * 2 + qg) * 4, buf + ((2 * mp + 1) * 2 + qg) * 4
                m = 2 * g + mp
                o += L(f'v_cvt_pk_bf16_f32 v{A}, v{A}, v{A + 1}', f'v_cvt_pk_bf16_f32 v{A + 1}, v{A + 2}, v{A + 3}',
                       f'v_cvt_pk_bf16_f32 v{A + 2}, v{B}, v{B + 1}', f'v_cvt_pk_bf16_f32 v{A + 3}, v{B + 2}, v{B + 3}')
                o.append(I(f'buffer_store_dwordx4 {R("v", A, 4)}, v{vST}, s[{sWS}:{sWS + 3}], s{sST + 2 * qg + (m >> 3)} offen offset:{(m & 7) * 512}{opt.get("stpol", "")}'))
        return o

    def stream_out(g, buf, lo, hi):
        o = outconv(g, buf)
        gcur = lo
        for k in range(0, len(o), 5):
            gcur = sc.stream(o[k:k + 4], gcur, hi)
            if sc.gaps[hi].X and gcur >= hi:
                sc.gaps[hi].X.append(o[k + 4])
            else:
                gcur = max(gcur, sc.place(o[k + 4], 'M', min(gcur + 1, hi), min(gcur + 6, hi), limit=16))
        return gcur

    p3g = 2 * marks['P3']
    sc.stream(L(f'v_accvgpr_read_b32 v{vST}, a{aSV + 2}', f'v_accvgpr_read_b32 v{vAK}, a{aSV + 3}'), p3g, p3g + 8)
    first_kv = min(p for p, d in dma_at.items() if d[1].tag['w'] in (KT[0].tag, VT[0].tag))
    assert first_kv > marks['P3'], (first_kv, marks)
    sc.stream(L(f'v_accvgpr_read_b32 v{vDV}, a{aSV + 4}', f'v_add_u32 v{vDK}, 0x8000, v{vDV}',
                f'v_mov_b32 v{vL}, 0', f'v_mov_b32 v{vL + 1}, 0'), p3g, 2 * first_kv)
    q1 = []
    for ks in range(4):
        for qg in range(2):
            q1 += qconv(ks, qg)
    g_end = sc.stream(q1, max(g_end, 2 * marks['P21'] + 5), 2 * marks['QK0'] - 2)
    for g in range(7):
        lo = 2 * (dtiles[g].last + 1) + 4
        hi = 2 * (dtiles[g].last + 1 + 16) - 1
        if g == 6:
            hi = 2 * (marks['QK0'] + 16) - 2
        stream_out(g, vDA[g & 1], lo, hi)
    q2 = []
    for ks in range(4, 8):
        for qg in range(2):
            q2 += qconv(ks, qg)
    sc.stream(q2, max(g_end, p3g + 5), 2 * marks['QK0'] - 1)
    if sc.gaps[2 * marks['QK0'] - 1].X:
        sc.gaps[2 * marks['QK0'] - 1].X += L('s_nop 1')

    def vexp(n, j):
        return I(f'v_exp_f32 v{vE + j}, v{vS[n & 1] + j}')

    def vadd(j):
        qg = (j >> 2) & 1
        if j & 11 == 0:
            return None
        if j & 11 == 1:
            return I(f'v_add_f32 v{vLT + qg}, v{vE + j - 1}, v{vE + j}')
        return I(f'v_add_f32 v{vLT + qg}, v{vLT + qg}, v{vE + j}')

    def vcvt(n, j):
        kg, qg, h = j >> 2, (j >> 1) & 1, j & 1
        return I(f'v_cvt_pk_bf16_f32 v{vP[n & 1] + 4 * qg + 2 * kg + h}, v{vE + 2 * j}, v{vE + 2 * j + 1}')

    def xreduce(t, op, last3=None):
        o = []
        for sw in ('32', '16'):
            for qg in range(2):
                o += L(f'v_mov_b32 v{t + 2 + qg}, v{t + qg}')
            for qg in range(2):
                o += L(f'v_permlane{sw}_swap_b32 v{t + qg}, v{t + 2 + qg}')
            for qg in range(2):
                if sw == '16' and last3:
                    o += L(f'{last3} v{t + qg}, v{t + qg}, v{t + 2 + qg}, 0')
                else:
                    o += L(f'{op} v{t + qg}, v{t + qg}, v{t + 2 + qg}')
        return o

    def rowmax(t, S, floor0):
        o = []
        for a, b in ((None, 0), (3, 8), (9, 10)):
            for qg in range(2):
                s = S + 4 * qg
                if a is None:
                    o += L(f'v_max3_f32 v{t + qg}, v{s}, v{s + 1}, v{s + 2}')
                else:
                    o += L(f'v_max3_f32 v{t + qg}, v{t + qg}, v{s + a}, v{s + b}')
        for qg in range(2):
            o += L(f'v_max_f32 v{t + qg}, v{t + qg}, v{S + 4 * qg + 11}')
        return o + xreduce(t, 'v_max_f32', 'v_max3_f32' if floor0 else None)

    slow = {}

    def slow_path(n, lab, started, redo_cvt):
        S, Sn, t = vS[n & 1], vS[(n + 1) & 1], vTM
        o = L('s_nop 15') + rowmax(t, S, True)
        for qg in range(2):
            o += L(f'v_sub_f32 v{t + 2 + qg}, 0, v{t + qg}')
        for qg in range(2):
            o += L(f'v_exp_f32 v{t + 2 + qg}, v{t + 2 + qg}')
        for k in range(16):
            qg = (k >> 2) & 1
            if k < 8:
                o += L(f'v_sub_f32 v{vNEG + k}, v{vNEG + k}, v{t + qg}')
            o += L(f'v_sub_f32 v{S + k}, v{S + k}, v{t + qg}')
            if started:
                o += L(f'v_sub_f32 v{Sn + k}, v{Sn + k}, v{t + qg}')
        for qg in range(2):
            o += L(f'v_mul_f32 v{vL + qg}, v{vL + qg}, v{t + 2 + qg}')
        if n > 0:
            for k in range(128):
                o += L(f'v_mul_f32 v{vO + k}, v{vO + k}, v{t + 2 + ((k >> 2) & 1)}')
        for k in range(16):
            o.append(vexp(n, k))
        for k in range(16):
            if vadd(k):
                o.append(vadd(k))
        for j in redo_cvt:
            o.append(vcvt(n, j))
        return L(f'slow_{lab}:') + pad_hazards(o) + L('s_nop 1', f's_branch back_{lab}')

    def label(n):
        return f'l{n & 3}' if LOOP_A <= n < LOOP_B else f't{n}'

    LOOP_A, LOOP_B = 2, 58

    def check_ops(n):
        return (I(f'v_add_f32 v{vCK}, v{vLT}, v{vLT + 1}'), I(f'v_cmp_nge_f32 vcc, s{sThr}, v{vCK}'),
                L(f's_cbranch_vccnz slow_{label(n)}', f'back_{label(n)}:'))

    def softmax(n, first=False):
        b = it0[n - 1] if n > 0 else it0[0] - 32
        pvstart = it0[n] + 16
        eg = {}
        for j in range(16):
            p = (EXP_V + EXP_K)[j]
            eg[j] = 2 * (b + p) + 1
            if first and p < 32:
                continue
            sc.put(eg[j], vexp(n, j), 'V')
        last = 0
        cv = {}
        for j in range(16):
            a = vadd(j)
            if a and not (first and (EXP_V + EXP_K)[j] < 31):
                last = sc.place(a, 'V', max(eg[j] + 1, last), 2 * (b + 41))
            if j & 1 and j < 8:
                jj = j >> 1
                if first:
                    cv[jj] = -1
                else:
                    cv[jj] = sc.place(vcvt(n, jj), 'V', max(eg[j] + 1, 2 * (b + 24)), 2 * (b + 39))
        ck, cmp_, br = check_ops(n)
        g = sc.place(ck, 'V', last, 2 * (b + 41) + 1)
        g = sc.place(cmp_, 'V', g, 2 * (b + 42))
        g = sc.place(br[0], 'S', g + 1, 2 * (b + 43))
        sc.gaps[g].S.append(br[1])
        assert g > 2 * (b + 32 + 8) + 1 and g < 2 * (b + 32 + EXP_V[0]) + 1
        slow[label(n)] = slow_path(n, label(n), True, [0, 1, 2, 3])
        gg = g
        for jj in range(4, 8):
            gg = sc.place(vcvt(n, jj), 'V', gg, 2 * pvstart - 2)
        for qg in range(2):
            sc.place(I(f'v_add_f32 v{vL + qg}, v{vL + qg}, v{vLT + qg}'), 'V', g, 2 * (b + 32 + EXP_V[1]))

    t = vTM
    init = L('s_waitcnt lgkmcnt(0)', 's_barrier')
    for pre, d, post in xtra_k4.dma:
        init += pre + L('s_nop 0') + [d]
    init += L(f's_mov_b32 s{sT}, {3 * 16384}') + init_tail
    o = rowmax(t, vS[0], False)
    for k in range(16):
        if k < 8:
            o += L(f'v_sub_f32 v{vNEG + k}, 0, v{t + (k >> 2)}')
        o += L(f'v_sub_f32 v{vS[0] + k}, v{vS[0] + k}, v{t + ((k >> 2) & 1)}')
    for j in range(12):
        o.append(vexp(0, j))
    for j in range(11):
        if vadd(j):
            o.append(vadd(j))
    for jj in range(4):
        o.append(vcvt(0, jj))
    sc.gaps[2 * it0[0] - 1].X += init + pad_hazards(o)
    softmax(0, first=True)
    for n in range(1, 63):
        softmax(n)
    b = it0[62]
    o = [('at', 2 * (b + 14))]
    for j in range(16):
        if j == 8:
            o.append(('at', 2 * (b + 18)))
        o.append(vexp(63, j))
        if j >= 1 and vadd(j - 1):
            o.append(vadd(j - 1))
        if j >= 3 and j & 1:
            o.append(vcvt(63, (j - 3) >> 1))
    o.append(vadd(15))
    o.append(vcvt(63, 7))
    ck, cmp_, br = check_ops(63)
    o += [ck, cmp_]
    gl = 2 * it0[63] - 1
    sc.stream(o, 2 * (b + 14), gl, limit=20)
    fin = L('s_nop 0') + br + L(f'v_add_f32 v{vRL}, v{vL}, v{vLT}', f'v_add_f32 v{vRL + 1}, v{vL + 1}, v{vLT + 1}')
    sc.gaps[gl].X += fin
    slow['t63'] = slow_path(63, 't63', False, list(range(8)))
    o = xreduce(vRL, 'v_add_f32')
    for x in o:
        x.tag = {'sep': 1}
    o += L(f'v_rcp_f32 v{vRL}, v{vRL}', f'v_rcp_f32 v{vRL + 1}, v{vRL + 1}')
    g = sc.stream(o, gl + 1, gl + 24)
    for qg in range(4):
        sc.place(I(f's_add_u32 s{sST + qg}, s{sST + qg}, {WS_S - WS_F}'), 'S', 2 * it0[60], 2 * it0[61])
    p5 = marks['P5']
    for ks in range(8):
        o = []
        for qg in range(2):
            X, Y = vO + ((2 * ks) * 2 + qg) * 4, vO + ((2 * ks + 1) * 2 + qg) * 4
            for r in range(4):
                o += L(f'v_mul_f32 v{X + r}, v{X + r}, v{vRL + qg}')
            o += L(f'v_cvt_pk_bf16_f32 v{X}, v{X}, v{X + 1}', f'v_cvt_pk_bf16_f32 v{X + 1}, v{X + 2}, v{X + 3}')
            for r in range(4):
                o += L(f'v_mul_f32 v{Y + r}, v{Y + r}, v{vRL + qg}')
            o += L(f'v_cvt_pk_bf16_f32 v{X + 2}, v{Y}, v{Y + 1}', f'v_cvt_pk_bf16_f32 v{X + 3}, v{Y + 2}, v{Y + 3}')
        lo = max(g, 2 * (it0[63] + 2 * ks + 1) + 1 + 5)
        hi = 2 * (p5 + 4 * ks) - 1
        hi0 = max(hi - 1, lo) if lo < hi else hi
        if lo >= hi:
            sc.gaps[hi].X += L('s_nop 7') + o + L('s_nop 1')
            g = hi
        else:
            g = sc.stream(o, lo, hi - 1)
    for g_ in range(7):
        last = otiles[2 * g_ + 1].last
        if g_ < 6:
            stream_out(g_, vDA[(g_ + 1) & 1], 2 * (last + 1) + 4, 2 * (last + 1 + 32) - 1)
        else:
            sc.gaps[2 * last + 1].X += L('s_nop 7') + outconv(g_, vDA[(g_ + 1) & 1])

    t = vL0
    p = L('s_cmp_ge_u32 s2, 256', 's_cbranch_scc1 done')
    if stamps:
        p += L(f's_memrealtime s[{sTS}:{sTS + 1}]', f's_memtime s[{sTS + 2}:{sTS + 3}]')
    p += L(f's_load_dwordx2 s[{sX}:{sX + 1}], s[0:1], 0', f's_load_dwordx4 s[{sGU}:{sGU + 3}], s[0:1], 48',
           f's_load_dwordx2 s[{sWQ}:{sWQ + 1}], s[0:1], 24', f's_load_dwordx2 s[{sWD}:{sWD + 1}], s[0:1], 64',
           f's_load_dwordx2 s[{sK}:{sK + 1}], s[0:1], 8', f's_load_dwordx2 s[{sV}:{sV + 1}], s[0:1], 16',
           f's_load_dwordx2 s[{sWO}:{sWO + 1}], s[0:1], 32', f's_load_dwordx2 s[{sWS}:{sWS + 1}], s[0:1], 88',
           f'v_lshrrev_b32 v{t}, 6, v0', f'v_and_b32 v{vLane}, 63, v0',
           f's_and_b32 s{sA}, s2, 7', f's_bfe_u32 s{sB}, s2, 0x10003', f's_lshr_b32 s{sTb}, s2, 4',
           f'v_readfirstlane_b32 s{sWv}, v{t}',
           f's_lshl_b32 s{sHead}, s{sA}, 1', f's_add_u32 s{sHead}, s{sHead}, s{sB}',
           f'v_and_b32 v{t + 1}, 15, v{vLane}', f'v_lshrrev_b32 v{t + 2}, 4, v{vLane}',
           f'v_lshl_add_u32 v{t + 3}, v{t}, 5, v{t + 1}', f'v_mul_u32_u24 v{t + 3}, 896, v{t + 3}',
           f'v_lshl_add_u32 v{t + 3}, v{t + 2}, 4, v{t + 3}',
           f's_mul_i32 s{sB}, s{sTb}, 114688', f's_mov_b32 s{sX + 2}, 114688', f's_mov_b32 s{sX + 3}, 0x20000',
           f's_mov_b32 s{sXq}, 14336', 's_waitcnt lgkmcnt(0)',
           f's_add_u32 s{sX}, s{sX}, s{sB}', f's_addc_u32 s{sX + 1}, s{sX + 1}, 0')
    for qg in range(2):
        for ks in range(14):
            p.append(I(f'buffer_load_dwordx4 {xd(qg, ks)}, v{t + 3}, s[{sX}:{sX + 3}], {f"s{sXq}" if qg else 0} offen offset:{64 * ks}', {'id': f'x{qg}{ks // 7}'}))
    p += L(f's_cmp_ge_u32 s{sWv}, 2', f's_cselect_b32 s{sGU}, s{sGU + 2}, s{sGU}', f's_cselect_b32 s{sGU + 1}, s{sGU + 3}, s{sGU + 1}',
           f's_mul_i32 s{sB}, s{sHead}, 224', f's_add_u32 s{sGU}, s{sGU}, s{sB}', f's_addc_u32 s{sGU + 1}, s{sGU + 1}, 0',
           f's_sub_u32 s{sGU + 2}, {448 * 3584}, s{sB}', f's_mov_b32 s{sGU + 3}, 0x20000',
           f's_and_b32 s{sB}, s{sWv}, 1', f's_mul_i32 s{sM0g}, s{sB}, 7168', f's_lshr_b32 s{sC}, s{sWv}, 1',
           f's_mul_i32 s{sC}, s{sC}, {SLOT}', f's_add_u32 s{sM0g}, s{sM0g}, s{sC}', f's_mul_i32 s{sB}, s{sB}, {32 * 3584}',
           f's_mul_i32 s{sM0}, s{sWv}, 4224')
    for pp in range(7):
        a, b_, c = t + 4, t + 5, t + 6
        p += L(f'v_add_u32 v{a}, {64 * pp}, v{vLane}', f'v_mul_u32_u24 v{b_}, 4682, v{a}', f'v_lshrrev_b32 v{b_}, 16, v{b_}',
               f'v_mul_u32_u24 v{c}, 14, v{b_}', f'v_sub_u32 v{a}, v{a}, v{c}',
               f'v_and_b32 v{c}, 12, v{b_}', f'v_lshlrev_b32 v{c}, 1, v{c}',
               f'v_lshrrev_b32 v{t + 7}, 4, v{b_}', f'v_lshl_add_u32 v{c}, v{t + 7}, 2, v{c}',
               f'v_and_b32 v{b_}, 3, v{b_}', f'v_add_u32 v{c}, v{c}, v{b_}',
               f'v_mul_u32_u24 v{c}, 3584, v{c}', f'v_lshl_add_u32 v{c}, v{a}, 4, v{c}',
               f'v_add_u32 v{c}, s{sB}, v{c}', f'v_subrev_u32 v{vDG + pp}, {1024 * (pp & 3)}, v{c}')
    for pre, d, post in pre_dma:
        p += pre + (L('s_nop 0') if pre else []) + [d] + post
    p += pre_tail
    p += L(f's_lshl_b32 s{sB}, s{sHead}, 9', f's_add_u32 s{sWQ}, s{sWQ}, s{sB}', f's_addc_u32 s{sWQ + 1}, s{sWQ + 1}, 0',
           f's_sub_u32 s{sWQ + 2}, {448 * 8192}, s{sB}', f's_mov_b32 s{sWQ + 3}, 0x20000',
           f's_mul_i32 s{sB}, s{sHead}, 100352', f's_add_u32 s{sWD}, s{sWD}, s{sB}', f's_addc_u32 s{sWD + 1}, s{sWD + 1}, 0',
           f's_mov_b32 s{sWD + 2}, 100352', f's_mov_b32 s{sWD + 3}, 0x20000',
           f's_mul_i32 s{sB}, s{sHead}, 229376', f's_add_u32 s{sWO}, s{sWO}, s{sB}', f's_addc_u32 s{sWO + 1}, s{sWO + 1}, 0',
           f's_mov_b32 s{sWO + 2}, 229376', f's_mov_b32 s{sWO + 3}, 0x20000',
           f's_lshl_b32 s{sB}, s{sA}, 20', f's_add_u32 s{sK}, s{sK}, s{sB}', f's_addc_u32 s{sK + 1}, s{sK + 1}, 0',
           f's_add_u32 s{sV}, s{sV}, s{sB}', f's_addc_u32 s{sV + 1}, s{sV + 1}, 0',
           f's_mov_b32 s{sK + 2}, 0x100000', f's_mov_b32 s{sK + 3}, 0x20000',
           f's_mov_b32 s{sV + 2}, 0x100000', f's_mov_b32 s{sV + 3}, 0x20000',
           f's_mov_b32 s{sWS + 2}, {64 << 20}', f's_mov_b32 s{sWS + 3}, 0x20000',
           f's_lshl_b32 s{sB}, s{sTb}, 4', f's_lshl_b32 s{sC}, s{sWv}, 2', f's_add_u32 s{sB}, s{sB}, s{sC}',
           f's_mul_i32 s{sB}, s{sB}, 114688', f's_mul_i32 s{sC}, s{sHead}, 7168', f's_add_u32 s{sST}, s{sB}, s{sC}',
           f's_add_u32 s{sST + 1}, s{sST}, 4096', f's_add_u32 s{sST + 2}, s{sST}, 229376', f's_add_u32 s{sST + 3}, s{sST}, {229376 + 4096}',
           f's_mov_b32 s{sWi}, 7136', f's_mov_b32 s{sWi + 1}, {2 * 7136}', f's_mov_b32 s{sWi + 2}, {3 * 7136}',
           f's_mov_b32 s{sThr}, 0x{0x3f800000 + (opt.get("T", 24) << 23):x}',
           f's_mov_b32 s{sOne}, 0x3f803f80', f's_mov_b32 s{sLo}, 0x00003f80', f's_mov_b32 s{sHi}, 0x3f800000')
    a, b_, c = t + 4, t + 5, t + 6
    p += L(f'v_lshrrev_b32 v{a}, 2, v{vLane}', f'v_and_b32 v{b_}, 3, v{vLane}', f'v_lshlrev_b32 v{b_}, 3, v{b_}',
           f'v_mul_u32_u24 v{c}, 1056, v{a}', f'v_add_u32 v{vAT0}, v{c}, v{b_}', f'v_add_u32 v{vAT1}, {4 * SLOT}, v{vAT0}',
           f'v_mul_u32_u24 v{c}, 224, v{a}', f'v_add_u32 v{vAG0}, v{c}, v{b_}', f'v_add_u32 v{vAG1}, {4 * SLOT}, v{vAG0}',
           f'v_and_b32 v{c}, 7, v{a}', f'v_mul_u32_u24 v{c}, 1056, v{c}', f'v_add_u32 v{c}, v{c}, v{b_}',
           f'v_lshrrev_b32 v{a}, 5, v{vLane}', f'v_lshl_add_u32 v{c}, v{a}, 7, v{c}', f'v_accvgpr_write_b32 a{aSV}, v{c}',
           f'v_add_u32 v{c}, {4 * SLOT}, v{c}', f'v_accvgpr_write_b32 a{aSV + 1}, v{c}',
           f'v_bfe_u32 v{a}, v{vLane}, 3, 1', f'v_mul_u32_u24 v{a}, 114688, v{a}', f'v_lshl_add_u32 v{a}, v{t + 2}, 7, v{a}',
           f'v_and_b32 v{c}, 7, v{vLane}', f'v_lshl_add_u32 v{a}, v{c}, 4, v{a}', f'v_accvgpr_write_b32 a{aSV + 2}, v{a}',
           f'v_mul_u32_u24 v{a}, 1056, v{t + 1}', f'v_lshl_add_u32 v{a}, v{t + 2}, 4, v{a}', f'v_add_u32 v{a}, {4 * SLOT}, v{a}',
           f'v_accvgpr_write_b32 a{aSV + 3}, v{a}',
           f'v_lshlrev_b32 v{a}, 4, v{vLane}', f'v_lshl_add_u32 v{a}, v{t}, 12, v{a}', f'v_accvgpr_write_b32 a{aSV + 4}, v{a}',
           f'v_lshrrev_b32 v{a}, 5, v{vLane}', f'v_lshlrev_b32 v{a}, 5, v{a}', f'v_bfe_u32 v{c}, v{vLane}, 4, 1',
           f'v_lshl_add_u32 v{a}, v{c}, 2, v{a}', f'v_lshl_add_u32 v{a}, v{t}, 3, v{a}', f'v_lshlrev_b32 v{a}, 13, v{a}',
           f'v_lshl_add_u32 v{vDW}, v{t + 1}, 4, v{a}',
           f'v_lshrrev_b32 v{a}, 1, v{t}', f'v_lshlrev_b32 v{a}, 6, v{a}', f'v_and_b32 v{c}, 56, v{vLane}', f'v_add_u32 v{a}, v{a}, v{c}',
           f'v_and_b32 v{c}, 1, v{t}', f'v_lshl_add_u32 v{a}, v{c}, 2, v{a}', f'v_mul_u32_u24 v{a}, 896, v{a}',
           f'v_and_b32 v{c}, 7, v{vLane}', f'v_lshl_add_u32 v{vDD}, v{c}, 4, v{a}')
    for qg in range(2):
        p += L(f'v_accvgpr_write_b32 a{aH + (qg * 4 + 3) * 4 + 2}, 0', f'v_accvgpr_write_b32 a{aH + (qg * 4 + 3) * 4 + 3}, 0')
    sm, mb, sq, tq = t + 8, t + 12, t + 16, t + 20
    ln = L(f'v_mov_b32 v{sm}, 0', f'v_mov_b32 v{sm + 1}, 0', f'v_mov_b32 v{sm + 2}, 0', f'v_mov_b32 v{sm + 3}, 0',
           f'v_mov_b32 v{sq}, 0', f'v_mov_b32 v{sq + 1}, 0', f'v_mov_b32 v{sq + 2}, 0', f'v_mov_b32 v{sq + 3}, 0')
    for qg in range(2):
        for hf in range(2):
            ln.append(vmwait([f'x{qg}{hf}']))
            for k in range(28):
                ln += L(f'v_dot2c_f32_bf16 v{sm + qg + 2 * (k & 1)}, s{sOne}, v{vXD + qg * 56 + hf * 28 + k}')
    ln += L(f'v_add_f32 v{sm}, v{sm}, v{sm + 2}', f'v_add_f32 v{sm + 1}, v{sm + 1}, v{sm + 3}')
    ln += xreduce(sm, 'v_add_f32')
    for qg in range(2):
        ln += L(f'v_mul_f32 v{sm + qg}, 0x{f2u(1 / 448):x}, v{sm + qg}')
    for qg in range(2):
        ln += L(f'v_cvt_pk_bf16_f32 v{mb + qg}, v{sm + qg}, v{sm + qg}', f'v_lshlrev_b32 v{mb + qg}, 16, v{mb + qg}',
                f'v_sub_f32 v{sm + qg}, v{sm + qg}, v{mb + qg}', f'v_xor_b32 v{mb + qg}, 0x80000000, v{mb + qg}')
    LAG = 2
    for k in range(112 + LAG + 1):
        if k < 112:
            x = vXD + k
            tt = tq + 2 * (k % 4)
            ln += L(f'v_dot2_f32_bf16 v{tt}, v{x}, s{sLo}, v{mb + k // 56}', f'v_dot2_f32_bf16 v{tt + 1}, v{x}, s{sHi}, v{mb + k // 56}')
        k1 = k - LAG
        if 0 <= k1 < 112:
            tt = tq + 2 * (k1 % 4)
            ln += L(f'v_cvt_pk_bf16_f32 v{vXD + k1}, v{tt}, v{tt + 1}')
        k2 = k - LAG - 1
        if 0 <= k2 < 112:
            ln += L(f'v_dot2c_f32_bf16 v{sq + k2 // 56 + 2 * (k2 & 1)}, v{vXD + k2}, v{vXD + k2}')
    ln += L(f'v_add_f32 v{sq}, v{sq}, v{sq + 2}', f'v_add_f32 v{sq + 1}, v{sq + 1}, v{sq + 3}')
    ln += xreduce(sq, 'v_add_f32')
    for qg in range(2):
        q_, d_ = sq + qg, sm + qg
        ln += L(f'v_mul_f32 v{q_}, 0x{f2u(1 / 448):x}, v{q_}', f'v_fma_f32 v{q_}, -v{d_}, v{d_}, v{q_}', f'v_max_f32 v{q_}, 0, v{q_}',
                f'v_cvt_pk_bf16_f32 v{q_}, v{q_}, v{q_}', f'v_lshlrev_b32 v{q_}, 16, v{q_}',
                f'v_add_f32 v{q_}, 0x{f2u(1e-5):x}, v{q_}', f'v_cvt_pk_bf16_f32 v{q_}, v{q_}, v{q_}', f'v_lshlrev_b32 v{q_}, 16, v{q_}',
                f'v_sqrt_f32 v{q_}, v{q_}', f'v_cvt_pk_bf16_f32 v{q_}, v{q_}, v{q_}', f'v_lshlrev_b32 v{q_}, 16, v{q_}',
                f'v_rcp_f32 v{q_}, v{q_}', f'v_mul_f32 v{vR2 + qg}, v{q_}, v{q_}', f'v_mul_f32 v{vCR + qg}, 0x{f2u(CSCALE):x}, v{q_}')
    p += pad_hazards(ln)
    p += [vmwait(pre_need), I('s_barrier')]
    for n in range(D):
        p += frags[n]

    def stamp(k):
        return L('s_waitcnt lgkmcnt(0)', f's_memtime s[{sTS + 2 * k}:{sTS + 2 * k + 1}]', 's_waitcnt lgkmcnt(0)')
    if stamps:
        p += stamp(2)
        for k, m in ((3, 'P20'), (4, 'P3'), (5, 'QK0'), (8, 'P5')):
            sc.gaps[2 * marks[m] - 1].X += stamp(k)
        sc.gaps[2 * it0[LOOP_A] - 1].X += stamp(6) + L(f's_memrealtime s[{sTS + 22}:{sTS + 23}]', 's_waitcnt lgkmcnt(0)')
    e = []
    if stamps:
        e = stamp(9) + L('s_waitcnt vmcnt(0)') + stamp(10) + L(f's_memrealtime s[{sTS + 26}:{sTS + 27}]', 's_waitcnt lgkmcnt(0)', 'v_mov_b32 v1, 0')
        for k in range(28):
            e += L(f'v_writelane_b32 v1, s{sTS + k}, {k}')
        e += L(f's_lshl_b32 s{sA}, s2, 2', f's_add_u32 s{sA}, s{sA}, s{sWv}', f's_lshl_b32 s{sA}, s{sA}, 8', f's_add_u32 s{sA}, s{sA}, {WS_T}',
               f'v_lshlrev_b32 v0, 2, v{vLane}', f's_mov_b32 s{sWS + 2}, {128 << 20}', f'buffer_store_dword v1, v0, s[{sWS}:{sWS + 3}], s{sA} offen')
    e += L('done:', 's_endpgm')

    ga, gb = 2 * it0[LOOP_A], 2 * it0[LOOP_B]
    MARK_A, MARK_B = I('; loop begin'), I('; loop end')
    segs = [p + sc.emit(0, ga)]
    for k in range(LOOP_A, LOOP_B, 4):
        segs.append(sc.emit(2 * it0[k], 2 * it0[k + 4]))
    tail = []
    if stamps:
        tail = stamp(7) + L(f's_memrealtime s[{sTS + 24}:{sTS + 25}]', 's_waitcnt lgkmcnt(0)')
    segs.append(tail + sc.emit(gb, None) + e)
    full = []
    for k, s in enumerate(segs):
        full += s + [I(f'; seg {k}')]
    full = add_lgkm_waits(full, 1)
    resolve_vm(full, [])
    segs2, cur = [], []
    for i in full:
        if i.text.startswith('; seg'):
            segs2.append(cur)
            cur = []
        else:
            cur.append(i)
    body_txt = [[x.text for x in s] for s in segs2[1:-1]]
    body = segs2[2]
    same = all(b == body_txt[1] for b in body_txt[1:])
    assert same, 'loop trips differ'
    if body_txt[0] != body_txt[1]:
        first = [x for x in segs2[1] if x.kind != 'wait']
        merged = []
        for y in body:
            if y.kind == 'wait':
                merged.append(I(y.text))
            else:
                x = first.pop(0)
                assert x.text == y.text, (x.text, y.text)
                merged.append(x)
        segs2[1] = merged
    ntrips = len(body_txt)
    loopctl = L(f's_sub_u32 s{sCnt}, s{sCnt}, 1', f's_cmp_lg_u32 s{sCnt}, 0', 's_cbranch_scc1 loop')
    trace = list(segs2[0]) + L(f's_mov_b32 s{sCnt}, {ntrips}')
    for s in segs2[1:-1]:
        trace += s + clone(loopctl)
    trace += segs2[-1]
    errs = check_trace(trace, verbose=True, name='k1')
    txt = [x.text for x in trace]
    for lab, sp in slow.items():
        k = txt.index(f'back_{lab}:')
        if lab[0] == 'l':
            k = txt.index(f'back_{lab}:', k + 1)
        tr = trace[:k] + sp + trace[k:k + 1500]
        errs += check_trace(tr, name='slow_' + lab)
    for x in errs[:30]:
        print('ERR', x)
    if opt.get('report'):
        names = ['P1', 'P20', 'P21', 'P3', 'QK0']
        bounds = [marks[x] for x in names] + [it0[0], it0[LOOP_A], it0[LOOP_A + 1], it0[LOOP_B], it0[62], it0[63], marks['P5'], NP]
        names += ['it0', 'itA', 'loop', 'tail', 'it62', 'it63', 'P5']
        for nm, a, b in zip(names, bounds, bounds[1:]):
            tot, over = sc.report(2 * a, 2 * b)
            print(f'{nm}: mfma {2 * (b - a)} ideal {32 * (b - a)} model {tot}', over if len(over) < 40 else f'{len(over)} over')
        extra = [i for i in trace if i.kind == 'wait' and not (i.tag and ('lg_ahead' in i.tag or 'wid' in i.tag))]
        print('extra waits', len(extra))
    code = segs2[0] + L(f's_mov_b32 s{sCnt}, {ntrips}', '.p2align 6', 'loop:') + body + loopctl + segs2[-1]
    for sp in slow.values():
        code += sp
    return code, errs


def gen_k2(opt):
    vF, vSs = 8, 72
    aF, aS = 136, 144
    p = L('s_cmp_ge_u32 s2, 256', 's_cbranch_scc1 done2',
          's_load_dwordx2 s[4:5], s[0:1], 88', 's_load_dwordx2 s[8:9], s[0:1], 0', 's_load_dwordx2 s[12:13], s[0:1], 72',
          'v_lshlrev_b32 v1, 4, v0', 's_mul_i32 s16, s2, 114688', f's_add_u32 s17, s16, {WS_S}',
          f's_mov_b32 s6, {64 << 20}', 's_mov_b32 s7, 0x20000', 's_mov_b32 s10, 1835008', 's_mov_b32 s11, 0x20000',
          's_mov_b32 s14, 1835008', 's_mov_b32 s15, 0x20000',
          'v_and_b32 v2, 7, v0', 's_lshl_b32 s18, s2, 3', 'v_add_u32 v2, s18, v2', 'v_mul_u32_u24 v2, 896, v2',
          'v_lshrrev_b32 v3, 5, v0', 'v_lshl_add_u32 v2, v3, 6, v2', 'v_bfe_u32 v3, v0, 3, 2', 'v_lshl_add_u32 v2, v3, 3, v2',
          's_mov_b32 s20, 0x00003f80', 's_mov_b32 s21, 0x3f800000', 's_waitcnt lgkmcnt(0)')
    for k in range(16):
        p += L(f'buffer_load_dwordx4 {R("v", vF + 4 * k, 4)}, v1, s[4:7], s16 offen', 's_add_u32 s16, s16, 7168')
    p += L('buffer_load_dwordx2 v[4:5], v2, s[8:11], 0 offen', 'buffer_load_dwordx2 v[6:7], v2, s[8:11], 0 offen offset:32')
    for k in range(16):
        p += L(f'buffer_load_dwordx4 {R("v", vSs + 4 * k, 4)}, v1, s[4:7], s17 offen', 's_add_u32 s17, s17, 7168')

    def acc(base, dst, nafter):
        o = []
        for k in range(16):
            o += L(f's_waitcnt vmcnt({nafter + 15 - k})')
            for r in range(4):
                for h, s in ((0, 20), (1, 21)):
                    c = f'v{dst + 2 * r + h}' if k else '0'
                    o += L(f'v_dot2_f32_bf16 v{dst + 2 * r + h}, v{base + 4 * k + r}, s{s}, {c}')
        return o
    p += acc(vF, aF, 18)
    g = []
    for k in range(8):
        g += L(f'v_mul_f32 v{152 + k}, 0x{f2u(-1.4426950408889634):x}, v{aF + k}')
    for k in range(8):
        g += L(f'v_exp_f32 v{152 + k}, v{152 + k}')
    for k in range(8):
        g += L(f'v_add_f32 v{152 + k}, 1.0, v{152 + k}')
    for k in range(8):
        g += L(f'v_rcp_f32 v{152 + k}, v{152 + k}')
    for k in range(8):
        g += L(f'v_mul_f32 v{aF + k}, v{aF + k}, v{152 + k}')
    for k in range(4):
        g += L(f'v_lshlrev_b32 v{160 + 2 * k}, 16, v{4 + k}', f'v_and_b32 v{161 + 2 * k}, 0xffff0000, v{4 + k}')
    p += L('s_nop 2') + g[:40] + acc(vSs, aS, 0) + g[40:]
    for k in range(8):
        p += L(f'v_fma_f32 v{160 + k}, v{aS + k}, v{aF + k}, v{160 + k}')
    for k in range(4):
        p += L(f'v_cvt_pk_bf16_f32 v{4 + k}, v{160 + 2 * k}, v{161 + 2 * k}')
    p += L('buffer_store_dwordx2 v[4:5], v2, s[12:15], 0 offen', 'buffer_store_dwordx2 v[6:7], v2, s[12:15], 0 offen offset:32',
           'done2:', 's_endpgm')
    errs = check_trace(p, verbose=True, name='k2')
    for x in errs:
        print('ERR', x)
    return p, errs


def kd(name, vgpr, acc):
    return f'''.amdhsa_kernel {name}
  .amdhsa_next_free_vgpr {vgpr}
  .amdhsa_next_free_sgpr 102
  .amdhsa_accum_offset {acc}
  .amdhsa_group_segment_fixed_size 0
  .amdhsa_kernarg_size 96
  .amdhsa_user_sgpr_count 2
  .amdhsa_user_sgpr_kernarg_segment_ptr 1
  .amdhsa_system_sgpr_workgroup_id_x 1
.end_amdhsa_kernel
'''


def build(opt):
    c1, e1 = gen_k1(opt)
    c2, e2 = gen_k2(opt)
    hdr = open(f'cdna_kernels/{NAME}.s.ref').read().split('; Override launch')[0]
    hdr += f'; @launch kernel={K1} grid=(256,1,1) block=(256,1,1) lds={8 * SLOT}\n'
    hdr += f'; @launch kernel={K2} grid=(256,1,1) block=(448,1,1) lds=0\n'
    s = hdr + '.amdgcn_target "amdgcn-amd-amdhsa--gfx950"\n.text\n'
    for nm, c in ((K1, c1), (K2, c2)):
        s += f'.globl {nm}\n.p2align 8\n.type {nm},@function\n{nm}:\n' + text_of(c)
    s += '.section .rodata,"a"\n.p2align 6\n' + kd(K1, 512, 256) + '.p2align 6\n' + kd(K2, 168, 168)
    return s, e1 + e2


if __name__ == '__main__':
    s, errs = build(dict(report=True))
    open('k_base.s', 'w').write(s)
    s, errs2 = build(dict(stamps=True))
    open('k_stamp.s', 'w').write(s)
    s, errs3 = build(dict(T=0))
    open('k_T0.s', 'w').write(s)
    print('errors', len(errs), len(errs2), len(errs3))
```
